```python
import torch

def _softmax(x, axis=-1):
    return torch.softmax(x, dim=axis)
def _gelu(x):
    return torch.nn.functional.gelu(x, approximate="tanh")
def _silu(x):
    return torch.nn.functional.silu(x)
def _sigmoid(x):
    return torch.sigmoid(x)
def _layernorm(x, axis=-1, eps=1e-5):
    m = x.mean(dim=axis, keepdim=True)
    v = x.var(dim=axis, keepdim=True, unbiased=False)
    return (x - m) / torch.sqrt(v + eps)
def _scatter_add(tgt, idx, src, axis=0):
    return tgt.clone().index_add_(axis, idx, src)
def _segment_sum(src, seg, n):
    out = torch.zeros((n,) + src.shape[1:], dtype=src.dtype)
    return out.index_add_(0, seg, src)
def _pad(x, pw):
    flat = tuple(v for pair in reversed(pw) for v in pair)
    return torch.nn.functional.pad(x, flat)

kernel_name = 'standalone__mha_block_cached__near_ridge'

def setup_inputs():

    _w = (lambda a: (lambda t: t.to(torch.bfloat16) if t.is_floating_point() else t)(torch.as_tensor(a)))
    B, Sq, D = 16, 144, 576
    H, Sk, Dh = 32, 512, 128
    return {
        "x": _w((lambda *s: torch.randn(*s, dtype=torch.bfloat16) * 0.8)(B, Sq, D)),
        "k_cache": _w((lambda *s: torch.randn(*s, dtype=torch.bfloat16) * 0.8)(B, H, Sk, Dh)),
        "v_cache": _w((lambda *s: torch.randn(*s, dtype=torch.bfloat16) * 0.05)(B, H, Sk, Dh)),
        "wq": _w((lambda *s: torch.randn(*s, dtype=torch.bfloat16) * 0.8)(D, H * Dh) * (D ** -0.5)),
        "wo": _w((lambda *s: torch.randn(*s, dtype=torch.bfloat16) * 0.05)(H * Dh, D) * ((H * Dh) ** -0.5)),
    }

def reference(x, k_cache, v_cache, wq, wo):
    B, Sq, D = x.shape
    H, Dh = 32, 128
    q = (lambda x, *d: x.permute(*d))((x @ wq).reshape(B, Sq, H, Dh), 0, 2, 1, 3)
    scores = torch.einsum("bhqd,bhkd->bhqk", q, k_cache) * (Dh ** -0.5)
    p = _softmax(scores, axis=-1)
    o = torch.einsum("bhqk,bhkd->bhqd", p, v_cache)
    return (lambda x, *d: x.permute(*d))(o, 0, 2, 1, 3).reshape(B, Sq, H * Dh) @ wo
```

```python
class Asm:
    def __init__(self):
        self.lines = []
        self.lbl = 0
    def __call__(self, s):
        for l in s.split("\n"):
            l = l.strip()
            if l: self.lines.append(l)
    def label(self, name):
        self.lines.append(name + ":")
    def newlabel(self, base="L"):
        self.lbl += 1
        return f"{base}_{self.lbl}"
    def text(self):
        out = []
        for l in self.lines:
            out.append(l if l.endswith(":") else "  " + l)
        return "\n".join(out) + "\n"

def vr(base, n=1):
    return f"v{base}" if n == 1 else f"v[{base}:{base+n-1}]"
def ar(base, n=1):
    return f"a{base}" if n == 1 else f"a[{base}:{base+n-1}]"
def sr(base, n=1):
    return f"s{base}" if n == 1 else f"s[{base}:{base+n-1}]"

class Op:
    __slots__ = ("text", "cost", "kind", "lds_tag", "needs", "vm_tag", "cost_cnt")
    def __init__(self, text, cost=4, kind="valu", lds_tag=None, needs=(), vm_tag=None):
        self.text = text; self.cost = cost; self.kind = kind
        self.lds_tag = lds_tag
        self.needs = tuple(needs)
        self.vm_tag = vm_tag

def schedule(mfmas, pinned, valu, caps=None):
    n = len(mfmas)
    cap = []
    for i, m in enumerate(mfmas):
        c = 24 if m.kind == "mfma32" else 8
        c -= sum(o.cost for o in pinned.get(i, []))
        cap.append(max(c, 0))
    total_cap = sum(cap); total_v = sum(o.cost for o in valu)
    out = list(pinned.get(-1, []))
    vi = 0; used = 0; cumcap = 0
    for i, m in enumerate(mfmas):
        out.append(m)
        out.extend(pinned.get(i, []))
        cumcap += cap[i]
        target = total_v * cumcap / max(total_cap, 1)
        room = cap[i]
        while vi < len(valu) and (used + valu[vi].cost * 0.5 <= target) :
            out.append(valu[vi]); used += valu[vi].cost; vi += 1
    out.extend(valu[vi:])
    return out

def insert_lgkm_waits(ops, prev_ops=None, maxcnt=15):
    hist = []
    done_upto = -1
    if prev_ops:
        for o in prev_ops:
            if o.kind in ("lds", "ldsw"): hist.append(o.lds_tag)
            if o.kind == "lgkm0": done_upto = len(hist) - 1
            if o.kind == "wait": done_upto = max(done_upto, len(hist) - 1 - o.cost_cnt)
    res = []
    for o in ops:
        if o.needs:
            idx = -1
            for t in o.needs:
                cand = [i for i, h in enumerate(hist) if h == t]
                if cand: idx = max(idx, cand[-1])
            if idx > done_upto:
                cnt = len(hist) - 1 - idx
                cnt = min(cnt, maxcnt)
                wop = Op(f"s_waitcnt lgkmcnt({cnt})", 0, "wait"); wop.cost_cnt = cnt
                res.append(wop)
                done_upto = len(hist) - 1 - cnt
        res.append(o)
        if o.kind in ("lds", "ldsw"): hist.append(o.lds_tag)
        if o.kind == "lgkm0": done_upto = len(hist) - 1
    return res

def emit_ops(A, ops):
    for o in ops: A(o.text)
```

```python
from asmlib import *
import struct

LDS_K = 0
LDS_V = 49152
LDS_STG = 98304
STG_SZ = 17408
WQ_OFF = 9216
sX, sW, sK, sV, sO = 4, 8, 12, 16, 20
sKb, sVb = 24, 26
sB, sJ, sHC, sH = 28, 29, 30, 31
sXo, sWo = 32, 33
sN, sKo, sVo = 34, 35, 36
sW4K, sC = 38, 39
sT = 40
vA, vB, vB9, vQd = 22, 24, 26, 28
vKd, vVd = 34, 38
vKa, vVa, vK9, vV9 = 40, 48, 52, 56
vL0, vL1, vL9 = 64, 65, 66
vP9, vS9, vZ = 70, 72, 76
vP0, vP1, vS0, vS1, vO = 80, 88, 96, 112, 128
aQ, aQ9, aK, aK9, aV, aV9, aO9 = 0, 64, 80, 112, 128, 160, 176
aFA, aFB = 80, 120

def f32bits(x): return struct.unpack("<I", struct.pack("<f", x))[0]
SCALE = 1.4426950408889634 * (128 ** -0.5)

def mfma32(d, a, b, c, needs=()):
    return Op(f"v_mfma_f32_32x32x16_bf16 {d}, {a}, {b}, {c}", 8, "mfma32", needs=needs)
def mfma16(d, a, b, c, needs=()):
    return Op(f"v_mfma_f32_16x16x32_bf16 {d}, {a}, {b}, {c}", 8, "mfma16", needs=needs)
def mfma16k16(d, a, b, c, needs=()):
    return Op(f"v_mfma_f32_16x16x16_bf16 {d}, {a}, {b}, {c}", 8, "mfma16", needs=needs)
def ldsr(text, tag): return Op(text, 4, "lds", lds_tag=tag)
def salu(text): return Op(text, 0, "salu")

def prologue(A):
    A(f"""
    s_cmp_ge_u32 s2, 256
    s_cbranch_scc1 K1_END
    s_load_dwordx4 s[4:7], s[0:1], 0
    s_load_dwordx4 s[12:15], s[0:1], 16
    s_load_dwordx2 s[20:21], s[0:1], 56
    v_lshrrev_b32 v1, 6, v0
    v_and_b32 v0, 63, v0
    s_nop 0
    v_readfirstlane_b32 s3, v1
    s_and_b32 s40, s2, 7
    s_lshr_b32 s41, s2, 3
    s_lshr_b32 s42, s40, 1
    s_lshl_b32 s42, s42, 2
    s_and_b32 s43, s41, 3
    s_add_u32 s{sB}, s42, s43
    s_and_b32 s42, s40, 1
    s_lshl_b32 s42, s42, 3
    s_lshr_b32 s43, s41, 2
    s_add_u32 s{sJ}, s42, s43
    s_lshl_b32 s{sW4K}, s3, 12
    s_mov_b32 s{sC}, {f32bits(SCALE):#x}
    s_waitcnt lgkmcnt(0)
    s_mov_b32 s{sKb}, s6
    s_mov_b32 s{sKb+1}, s7
    s_mov_b32 s{sVb}, s12
    s_mov_b32 s{sVb+1}, s13
    s_mov_b32 s8, s14
    s_mov_b32 s9, s15
    s_mov_b32 s10, {576*8192}
    s_mov_b32 s11, 0x20000
    s_mul_i32 s40, s{sB}, {144*1152}
    s_add_u32 s4, s4, s40
    s_addc_u32 s5, s5, 0
    s_sub_u32 s6, {16*144*1152}, s40
    s_mov_b32 s7, 0x20000
    s_mov_b32 s22, {72*256*1024}
    s_mov_b32 s23, 0x20000
    s_mov_b32 s14, 131072
    s_mov_b32 s15, 0x20000
    s_mov_b32 s18, 131072
    s_mov_b32 s19, 0x20000
    """)
    A(f"""
    s_and_b32 s44, s3, 1
    s_lshr_b32 s45, s3, 1
    """)
    A("""
    v_and_b32 v1, 15, v0
    v_lshrrev_b32 v2, 4, v0
    v_and_b32 v3, 31, v0
    v_lshrrev_b32 v4, 5, v0
    v_lshrrev_b32 v5, 2, v1
    v_and_b32 v6, 3, v0
    v_and_b32 v7, 1, v2
    """)
    A(f"""
    s_lshl_b32 s46, s45, 13
    v_lshlrev_b32 v8, 8, v3
    v_add_u32 v8, s46, v8
    v_xor_b32 v9, v4, v1
    v_lshl_add_u32 v8, v9, 4, v8
    """)
    for ks in range(8): A(f"v_xor_b32 v{vKa+ks}, {ks<<5}, v8")
    A(f"""
    v_lshl_add_u32 v8, v4, 2, v5
    v_lshlrev_b32 v8, 8, v8
    v_add_u32 v8, s46, v8
    v_add_u32 v8, {LDS_V}, v8
    v_lshrrev_b32 v9, 1, v6
    v_lshl_add_u32 v9, v7, 1, v9
    v_lshlrev_b32 v10, 2, v5
    v_lshl_or_b32 v10, v4, 1, v10
    v_xor_b32 v9, v9, v10
    v_lshl_add_u32 v8, v9, 4, v8
    v_and_b32 v9, 1, v6
    v_lshl_add_u32 v8, v9, 3, v8
    s_lshl_b32 s47, s45, 7
    v_xor_b32 v8, s47, v8
    """)
    for d in range(4): A(f"v_xor_b32 v{vVa+d}, {d<<6}, v8")
    A(f"""
    s_lshl_b32 s48, s44, 12
    s_add_u32 s48, s48, s46
    v_lshlrev_b32 v8, 8, v1
    v_add_u32 v8, s48, v8
    v_xor_b32 v9, v2, v1
    v_lshl_add_u32 v8, v9, 4, v8
    """)
    for ks in range(4): A(f"v_xor_b32 v{vK9+ks}, {ks<<6}, v8")
    A(f"""
    v_lshl_add_u32 v8, v2, 2, v5
    v_lshlrev_b32 v8, 8, v8
    v_add_u32 v8, s48, v8
    v_add_u32 v8, {LDS_V}, v8
    v_lshrrev_b32 v9, 1, v6
    v_lshlrev_b32 v10, 2, v5
    v_lshl_or_b32 v10, v7, 1, v10
    v_xor_b32 v9, v9, v10
    v_lshl_add_u32 v8, v9, 4, v8
    v_and_b32 v9, 1, v6
    v_lshl_add_u32 v8, v9, 3, v8
    """)
    for d in range(8): A(f"v_xor_b32 v{vV9+d}, {d<<5}, v8")
    A("v_lshlrev_b32 v8, 8, v2")
    for m in range(4):
        A(f"""
        v_add_u32 v9, {4*m}, v2
        v_xor_b32 v9, v9, v1
        v_lshl_add_u32 v{vKd+m}, v9, 4, v8
        """)
    for p in range(2):
        A(f"""
        v_lshlrev_b32 v9, 2, v2
        v_or_b32 v9, {p<<1}, v9
        v_xor_b32 v9, v9, v1
        v_lshl_add_u32 v{vVd+p}, v9, 4, v8
        """)
    A(f"""
    v_lshl_add_u32 v8, v4, 3, v5
    v_lshlrev_b32 v8, 8, v8
    v_add_u32 v8, {LDS_STG+WQ_OFF}, v8
    v_lshrrev_b32 v9, 1, v6
    v_lshl_add_u32 v9, v7, 1, v9
    v_lshlrev_b32 v10, 2, v5
    v_xor_b32 v9, v9, v10
    v_lshl_add_u32 v8, v9, 4, v8
    v_and_b32 v9, 1, v6
    v_lshl_add_u32 v8, v9, 3, v8
    s_lshl_b32 s49, s3, 6
    v_xor_b32 v{vA}, s49, v8
    v_xor_b32 v{vA+1}, 64, v{vA}
    """)
    A(f"""
    s_lshl_b32 s49, s44, 12
    v_lshlrev_b32 v8, 6, v3
    v_lshrrev_b32 v9, 2, v3
    v_and_b32 v9, 3, v9
    v_xor_b32 v9, v9, v4
    v_lshl_add_u32 v8, v9, 4, v8
    v_add_u32 v8, {LDS_STG}, v8
    v_add_u32 v{vB}, s49, v8
    v_xor_b32 v{vB+1}, 32, v{vB}
    v_add_u32 v{vB9}, {128*64}, v8
    v_xor_b32 v{vB9+1}, 32, v{vB9}
    """)
    A(f"""
    v_lshrrev_b32 v8, 2, v0
    v_mul_u32_u24 v8, 1152, v8
    v_and_b32 v9, 3, v2
    v_xor_b32 v9, v9, v6
    v_lshl_add_u32 v11, v9, 4, v8
    v_lshlrev_b32 v8, 13, v2
    v_lshlrev_b32 v9, 2, v2
    v_xor_b32 v9, v9, v1
    v_lshl_add_u32 v12, v9, 4, v8
    s_cmp_eq_u32 s3, 0
    s_cbranch_scc1 K1_P_R0
    s_cmp_eq_u32 s3, 1
    s_cbranch_scc1 K1_P_R1
    """)
    for i, m in enumerate((3, 4, 5, 6)):
        A(f"v_add_u32 v{vQd+i}, {4*m*8192 - (m-3)*1024}, v12")
    A(f"v_add_u32 v{vQd+4}, {4*7*8192}, v12")
    A(f"v_mov_b32 v{vQd+5}, v12")
    A("s_branch K1_P_DONE")
    A.label("K1_P_R0")
    for n in range(6):
        n0 = 0 if n < 4 else 4
        A(f"v_add_u32 v{vQd+n}, {16*n*1152 - (n-n0)*1024}, v11")
    A("s_branch K1_P_DONE")
    A.label("K1_P_R1")
    for i, n in enumerate((6, 7, 8)):
        A(f"v_add_u32 v{vQd+i}, {16*n*1152 - (n-6)*1024}, v11")
    for i, m in enumerate((0, 1, 2)):
        A(f"v_add_u32 v{vQd+3+i}, {4*m*8192 - m*1024}, v12")
    A.label("K1_P_DONE")
    for i in range(4): A(f"v_mov_b32 v{vZ+i}, 0")
    A(f"s_mov_b32 s{sHC}, 0")

def q_dma_ops(role, buf):
    base = LDS_STG + buf * STG_SZ
    ops = []
    def dma(v, srd, soff, off):
        return Op(f"buffer_load_dwordx4 v{v}, s[{srd}:{srd+3}], s{soff} offen offset:{off} lds", 9, "dma")
    def m0(val): return salu(f"s_mov_b32 m0, {val}")
    if role == 0:
        for n in range(6):
            n0 = 0 if n < 4 else 4
            pre = [m0(base + n0 * 1024)] if n == n0 else []
            ops.append((pre, dma(vQd + n, sX, sXo, (n - n0) * 1024)))
    elif role == 1:
        for i, n in enumerate((6, 7, 8)):
            pre = [m0(base + 6 * 1024)] if i == 0 else []
            ops.append((pre, dma(vQd + i, sX, sXo, (n - 6) * 1024)))
        for i, m in enumerate((0, 1, 2)):
            pre = [m0(base + WQ_OFF)] if i == 0 else []
            ops.append((pre, dma(vQd + 3 + i, sW, sWo, m * 1024)))
    elif role == 2:
        for i, m in enumerate((3, 4, 5, 6)):
            pre = [m0(base + WQ_OFF + 3 * 1024)] if i == 0 else []
            ops.append((pre, dma(vQd + i, sW, sWo, (m - 3) * 1024)))
        ops.append(([m0(base + WQ_OFF + 7 * 1024)], dma(vQd + 4, sW, sWo, 0)))
    return ops
NQD = {0: 6, 1: 6, 2: 5}

def fill_group_ops(g):
    blk, q = divmod(g, 4)
    isV = blk in (1, 3)
    step = {0: 0, 1: 0, 2: 1, 3: 1, 4: 2}[blk]
    lds = (LDS_V if isV else LDS_K) + step * 16384 + q * 4096
    goff = step * 16384 + q * 4096
    srd = sV if isV else sK
    ops = []
    for m in range(4):
        v = (vVd + (m & 1)) if isV else (vKd + m)
        pre = [salu(f"s_mov_b32 m0, {lds}"), salu(f"s_mov_b32 s{sT+10}, {goff}")] if m == 0 else []
        ops.append((pre, Op(f"buffer_load_dwordx4 v{v}, s[{srd}:{srd+3}], s{sT+10} offen offset:{m*1024} nt lds", 9, "dma")))
    return ops

def q_frag_reads(fs, buf, acc_tag):
    off0 = buf * STG_SZ
    ops = []
    for u in range(2):
        for f in range(2):
            for e in range(2):
                r = fs + (f * 2 + u) * 4 + e * 2
                ops.append(ldsr(f"ds_read_b64_tr_b16 {ar(r,2)}, v{vA+f} offset:{off0 + (16*u + 4*e)*256}", (acc_tag, "A", f, u, e)))
        for t in range(3):
            r = fs + 16 + (t * 2 + u) * 4
            if t < 2: a, off = vB + u, off0 + t * 2048
            else: a, off = vB9 + u, off0
            ops.append(ldsr(f"ds_read_b128 {ar(r,4)}, v{a} offset:{off}", (acc_tag, "B", t, u)))
    return ops

def q_mfmas(fs, tag, first):
    ms = []
    for u in range(2):
        for (f, t, acc) in ((0, 0, 0), (0, 1, 1), (1, 0, 2), (1, 1, 3), (0, 2, 4)):
            d = vr(vO + acc * 16, 16)
            a = ar(fs + (f * 2 + u) * 4, 4); b = ar(fs + 16 + (t * 2 + u) * 4, 4)
            c = "0" if (first and u == 0) else d
            ms.append(mfma32(d, a, b, c, needs=[(tag, "A", f, u, 0), (tag, "A", f, u, 1), (tag, "B", t, u)]))
    return ms

def q_stage(role, s_mod3, par, do_dma, do_read, vm, first=False, fill=None):
    fs_cur = (aFA, aFB)[par]; fs_nxt = (aFA, aFB)[par ^ 1]
    pre = []
    if vm is not None: pre.append(Op(f"s_waitcnt vmcnt({vm}) lgkmcnt(0)", 0, "lgkm0"))
    else: pre.append(Op("s_waitcnt lgkmcnt(0)", 0, "lgkm0"))
    pre.append(Op("s_barrier", 0, "bar"))
    ms = q_mfmas(fs_cur, ("q", par), first)
    for m in ms: m.needs = ()
    pinned = {i: [] for i in range(-1, 10)}
    pinned[-1] = pre
    if do_read:
        rd = q_frag_reads(fs_nxt, (s_mod3 + 1) % 3, ("q", par ^ 1))
        for i, o in enumerate(rd): pinned[i // 2].append(o)
    dm = []
    if role < 3 and do_dma: dm = q_dma_ops(role, s_mod3)
    if role == 3 and fill is not None: dm = fill_group_ops(fill)
    if dm:
        n = len(dm)
        pos = [1, 3, 4, 6, 7, 9][:n] if n > 4 else [1, 3, 6, 8][:n]
        for (pr, d), p in zip(dm, pos):
            pinned[p - 1] = pinned[p - 1] + pr
            pinned[p] = pinned[p] + [d]
    tail = []
    if role < 3:
        tail = [salu(f"s_add_u32 s{sXo}, s{sXo}, 64"), salu(f"s_add_u32 s{sWo}, s{sWo}, {32*8192}")]
    pinned[9] = pinned[9] + tail
    return schedule(ms, pinned, [])

def q_phase(A, role):
    L = f"K1_Q{role}"
    A.label(L)
    if role < 3:
        A(f"s_mov_b32 s{sXo}, 0")
        A(f"s_lshl_b32 s{sWo}, s{sH}, 8")
        for s in range(3):
            for pr, d in q_dma_ops(role, s):
                for p in pr: A(p.text)
                if pr: A("s_nop 0")
                A(d.text)
            A(f"s_add_u32 s{sXo}, s{sXo}, 64\ns_add_u32 s{sWo}, s{sWo}, {32*8192}")
        A(f"s_waitcnt vmcnt({2*NQD[role]})")
    else:
        for g in range(2):
            for pr, d in fill_group_ops(g):
                for p in pr: A(p.text)
                if pr: A("s_nop 0")
                A(d.text)
    A("s_barrier")
    for o in q_frag_reads(aFA, 0, ("q", 0)): A(o.text)
    n = NQD.get(role, 0)
    if role < 3:
        A(f"s_mov_b32 s{sT}, 0")
        lp = f"{L}_LOOP"
        A.label(lp)
        for s in range(6):
            emit_ops(A, q_stage(role, s % 3, s & 1, True, True, n))
        A(f"s_add_u32 s{sT}, s{sT}, 1\ns_cmp_lt_u32 s{sT}, 2\ns_cbranch_scc1 {lp}")
        for s in range(12, 18):
            vm = n if s <= 15 else None
            if s == 16: vm = 0
            emit_ops(A, q_stage(role, s % 3, s & 1, s <= 14, s <= 16, vm))
    else:
        for s in range(18):
            emit_ops(A, q_stage(role, s % 3, s & 1, False, s <= 16, None, fill=2 + s))
    A("s_branch K1_QX")

def zero_acc_q(A):
    for i in range(5):
        A(f"v_mfma_f32_32x32x16_bf16 {vr(vO+16*i,16)}, {vr(vZ,4)}, {vr(vZ,4)}, 0")

def q_exchange(A):
    A.label("K1_QX")
    A("s_nop 15\ns_nop 7")
    A("s_waitcnt lgkmcnt(0)\ns_barrier")
    A(f"""
    v_and_b32 v1, 15, v0
    v_and_b32 v3, 31, v0
    v_lshrrev_b32 v4, 5, v0
    s_and_b32 s44, s3, 1
    s_lshl_b32 s46, s44, 14
    v_lshlrev_b32 v8, 8, v3
    v_lshl_add_u32 v8, v1, 4, v8
    v_lshl_add_u32 v8, v4, 3, v8
    v_add_u32 v8, {LDS_STG}, v8
    v_add_u32 v9, s46, v8
    v_add_u32 v10, {128*256}, v8
    s_lshl_b32 s47, s3, 6
    s_xor_b32 s48, s47, 64
    """)
    accs = ((0, 0, 0), (0, 1, 1), (1, 0, 2), (1, 1, 3), (0, 2, 4))
    for (f, t, acc) in accs:
        base = 9 if t < 2 else 10
        A(f"v_xor_b32 v11, s{47 if f == 0 else 48}, v{base}")
        for rq in range(4):
            r = vO + acc * 16 + rq * 4
            A(f"""
            v_mul_f32 v12, s{sC}, v{r}
            v_mul_f32 v13, s{sC}, v{r+1}
            v_mul_f32 v14, s{sC}, v{r+2}
            v_mul_f32 v15, s{sC}, v{r+3}
            v_xor_b32 v16, {rq<<4}, v11
            v_cvt_pk_bf16_f32 v12, v12, v13
            v_cvt_pk_bf16_f32 v13, v14, v15
            ds_write_b64 v16, v[12:13] offset:{8192*t if t < 2 else 0}
            """)
    for i in range(8):
        A(f"v_mfma_f32_32x32x16_bf16 {vr(vO+16*i,16)}, {vr(vZ,4)}, {vr(vZ,4)}, 0")
    for i in range(8):
        A(f"v_mfma_f32_16x16x32_bf16 {ar(aO9+4*i,4)}, {vr(vZ,4)}, {vr(vZ,4)}, 0")
    for i in range(8): A(f"v_mov_b32 v{vP1+i}, 0")
    A(f"v_mov_b32 v{vL0}, 0\nv_mov_b32 v{vL1}, 0\nv_mov_b32 v{vL9}, 0")
    A("s_waitcnt lgkmcnt(0)\ns_barrier")
    A(f"""
    v_lshlrev_b32 v8, 8, v3
    v_xor_b32 v9, v4, v1
    v_lshl_add_u32 v8, v9, 4, v8
    v_add_u32 v8, {LDS_STG}, v8
    v_add_u32 v8, s46, v8
    """)
    for ks in range(8):
        A(f"v_xor_b32 v9, {ks<<5}, v8")
        A(f"ds_read_b128 {ar(aQ+ks*4,4)}, v9")
        A(f"ds_read_b128 {ar(aQ+32+ks*4,4)}, v9 offset:8192")
    A(f"""
    v_lshrrev_b32 v2, 4, v0
    v_lshlrev_b32 v8, 8, v1
    v_xor_b32 v9, v2, v1
    v_lshl_add_u32 v8, v9, 4, v8
    v_add_u32 v8, {LDS_STG + 128*256}, v8
    """)
    for ks in range(4):
        A(f"v_xor_b32 v9, {ks<<6}, v8")
        A(f"ds_read_b128 {ar(aQ9+ks*4,4)}, v9")

def softmax_ops(S, P, L, n):
    ops = []
    for i in range(n):
        ops.append(Op(f"v_exp_f32 v{S+i}, v{S+i}", 8))
        if i >= 1: ops.append(Op(f"v_add_f32 v{L}, v{L}, v{S+i-1}", 4))
        if i >= 2 and i % 2 == 0:
            ops.append(Op(f"v_cvt_pk_bf16_f32 v{P+(i-2)//2}, v{S+i-2}, v{S+i-1}", 4))
    ops.append(Op(f"v_add_f32 v{L}, v{L}, v{S+n-1}", 4))
    ops.append(Op(f"v_cvt_pk_bf16_f32 v{P+(n-2)//2}, v{S+n-2}, v{S+n-1}", 4))
    return ops

def k_reads(slot, tag):
    return [ldsr(f"ds_read_b128 {ar(aK+4*ks,4)}, v{vKa+ks} offset:{slot*16384}", (tag, "K", ks)) for ks in range(8)]
def k9_reads(slot, tag):
    return [ldsr(f"ds_read_b128 {ar(aK9+4*ks,4)}, v{vK9+ks} offset:{slot*16384}", (tag, "K9", ks)) for ks in range(4)]
def v_reads(slot, tag, ks2, d):
    r = aV + (ks2 * 4 + d) * 4
    return [ldsr(f"ds_read_b64_tr_b16 {ar(r+2*e,2)}, v{vVa+d} offset:{slot*16384 + (16*ks2+8*e)*256}", (tag, "V", ks2, d, e)) for e in range(2)]
def v9_reads(slot, tag):
    return [ldsr(f"ds_read_b64_tr_b16 {ar(aV9+2*d,2)}, v{vV9+d} offset:{slot*16384}", (tag, "V9", d)) for d in range(8)]

def qk_mfmas(S, t, tag):
    ms = []
    for ks in range(8):
        c = "0" if ks == 0 else vr(S, 16)
        ms.append(mfma32(vr(S, 16), ar(aK + 4 * ks, 4), ar(aQ + 32 * t + 4 * ks, 4), c, needs=[(tag, "K", ks)] if tag else []))
    return ms
def qk9_mfmas(tag):
    ms = []
    for ks in range(4):
        c = "0" if ks == 0 else vr(vS9, 4)
        ms.append(mfma16(vr(vS9, 4), ar(aK9 + 4 * ks, 4), ar(aQ9 + 4 * ks, 4), c, needs=[(tag, "K9", ks)]))
    return ms
def pv_mfmas(t, P, tag):
    ms = []
    for ks2 in range(2):
        for d in range(4):
            o = vr(vO + (t * 4 + d) * 16, 16)
            ms.append(mfma32(o, ar(aV + (ks2 * 4 + d) * 4, 4), vr(P + 4 * ks2, 4), o, needs=[(tag, "V", ks2, d, 0), (tag, "V", ks2, d, 1)] if tag else []))
    return ms
def pv9_mfmas(tag):
    ms = []
    for d in range(8):
        o = ar(aO9 + 4 * d, 4)
        ms.append(mfma16k16(o, ar(aV9 + 2 * d, 2), vr(vP9, 2), o, needs=[(tag, "V9", d)]))
    return ms

def kv_dma(slot_k, slot_v, guard_k, guard_v, A):
    res = []
    for m in range(4):
        pre = [salu(f"s_add_u32 m0, s{sW4K}, {LDS_K + slot_k*16384}")] if m == 0 else []
        res.append((pre, f"buffer_load_dwordx4 v{vKd+m}, s[{sK}:{sK+3}], s{sKo} offen offset:{m*1024} nt lds", guard_k))
    for m in range(4):
        pre = [salu(f"s_add_u32 m0, s{sW4K}, {LDS_V + slot_v*16384}")] if m == 0 else []
        res.append((pre, f"buffer_load_dwordx4 v{vVd+(m&1)}, s[{sV}:{sV+3}], s{sVo} offen offset:{m*1024} nt lds", guard_v))
    out = []
    for pre, txt, g in res:
        if g:
            lb = A.newlabel("K1_SK")
            txt = f"s_cbranch_vccnz {lb}\n{txt}\n{lb}:"
        out.append((pre, Op(txt, 9 + (4 if g else 0), "dma")))
    return out

def att_step_ops(A, v):
    sl_n, sl_n1 = v, (v + 1) % 3
    msE = qk_mfmas(vS1, 1, "Kc") + pv_mfmas(1, vP1, "Vc")
    pin = {i: [] for i in range(-1, 16)}
    kr = k_reads(sl_n1, "Kn")
    for ks in range(8): pin[ks].append(kr[ks])
    for i in range(8):
        ks2, d = divmod(i, 4)
        pin[8 + i].extend(v_reads(sl_n, "Vn", ks2, d))
    E = schedule(msE, pin, softmax_ops(vS0, vP0, vL0, 16))
    msO = qk_mfmas(vS0, 0, "Kn") + qk9_mfmas("K9n") + pv_mfmas(0, vP0, "Vn") + pv9_mfmas("V9n")
    pin = {i: [] for i in range(-1, 28)}
    k9 = k9_reads(sl_n1, "K9n"); v9 = v9_reads(sl_n, "V9n")
    for i in range(4): pin[i].append(k9[i])
    for i in range(8): pin[4 + i if i < 4 else 8 + i].append(v9[i])
    dm = kv_dma(v, (v + 2) % 3, True, v != 2, A)
    pos = [1, 3, 5, 7, 13, 15, 17, 19]
    for (pr, d), p in zip(dm, pos):
        pin[p - 1] = pin[p - 1] + pr
        pin[p] = pin[p] + [d]
    pin[19] = pin[19] + [salu(f"s_add_u32 s{sKo}, s{sKo}, 16384"), salu(f"s_add_u32 s{sVo}, s{sVo}, 16384")]
    O = schedule(msO, pin, softmax_ops(vS9, vP9, vL9, 4) + softmax_ops(vS1, vP1, vL1, 16))
    return E, O

def rename(ops, mp):
    for o in ops:
        if o.lds_tag and o.lds_tag[0] in mp: o.lds_tag = (mp[o.lds_tag[0]],) + o.lds_tag[1:]
        o.needs = tuple(((mp[t[0]],) + t[1:]) if t[0] in mp else t for t in o.needs)

def attention(A):
    A.label("K1_ATT")
    A(f"""
    s_mov_b32 s{sN}, 0
    s_add_u32 s{sKo}, s{sW4K}, {3*16384}
    s_add_u32 s{sVo}, s{sW4K}, {2*16384}
    s_mov_b64 vcc, 0
    s_waitcnt vmcnt(63) lgkmcnt(0)
    s_barrier
    """)
    for o in k_reads(0, "p") + k9_reads(0, "p"): A(o.text)
    A("s_waitcnt lgkmcnt(0)")
    for o in qk_mfmas(vS0, 0, None): A(o.text)
    for o in qk9_mfmas("p"): A(o.text)
    A("s_waitcnt vmcnt(32)")
    A("s_branch K1_S0_BAR")
    bodies = []
    for v in range(3):
        E, O = att_step_ops(A, v)
        bodies.append(E + O)
    for v in range(3):
        import copy
        pp = copy.deepcopy(bodies[(v + 1) % 3]); rename(pp, {"Kn": "y0", "Vn": "y1", "K9n": "y2", "V9n": "y3", "Kc": "y4", "Vc": "y5"})
        prev = insert_lgkm_waits(copy.deepcopy(bodies[(v + 2) % 3]), pp)
        rename(prev, {"Kc": "z0", "Vc": "z1"})
        rename(prev, {"Kn": "Kc", "Vn": "Vc", "K9n": "x1", "V9n": "x2"})
        ops = insert_lgkm_waits(bodies[v], prev)
        A.label(f"K1_S{v}")
        if v == 0:
            A(f"""
            s_cbranch_vccnz K1_S0_W4
            s_waitcnt vmcnt(8)
            s_branch K1_S0_BAR
            K1_S0_W4:
            s_waitcnt vmcnt(4)
            """.replace("K1_S0_W4:", "\nK1_S0_W4:"))
            A.label("K1_S0_BAR")
        elif v == 1:
            A(f"""
            s_cbranch_vccnz K1_S1_W0
            s_waitcnt vmcnt(8)
            s_branch K1_S1_BAR
            """)
            A.label("K1_S1_W0")
            A("s_waitcnt vmcnt(0)")
            A.label("K1_S1_BAR")
        else:
            A("s_waitcnt vmcnt(8)")
            A(f"s_cmp_eq_u32 s{sN}, 5\ns_cselect_b64 vcc, -1, 0")
        A("s_barrier")
        emit_ops(A, ops)
        A(f"s_add_u32 s{sN}, s{sN}, 1")
        if v == 1:
            A(f"s_cmp_eq_u32 s{sN}, 8\ns_cbranch_scc1 K1_DRAIN")
        if v == 2:
            A("s_branch K1_S0")
    A.label("K1_DRAIN")
    A("s_waitcnt lgkmcnt(0)")
    for o in pv_mfmas(1, vP1, None): A(o.text)

def epilogue(A):
    EX9 = 65536; EXL = 98304
    A("s_nop 15\ns_nop 7")
    A("s_waitcnt vmcnt(0) lgkmcnt(0)\ns_barrier")
    A(f"""
    v_mov_b32 v1, v{vL9}
    s_nop 1
    v_permlane16_swap_b32 v{vL9}, v1
    s_nop 1
    v_add_f32 v{vL9}, v{vL9}, v1
    v_mov_b32 v1, v{vL9}
    s_nop 1
    v_permlane32_swap_b32 v{vL9}, v1
    s_nop 1
    v_add_f32 v{vL9}, v{vL9}, v1
    v_lshlrev_b32 v2, 4, v0
    s_lshl_b32 s40, s3, 14
    v_add_u32 v3, s40, v2
    s_lshl_b32 s41, s3, 13
    v_add_u32 v4, s41, v2
    v_add_u32 v4, {EX9}, v4
    s_mul_i32 s42, s3, 768
    v_lshlrev_b32 v5, 2, v0
    v_add_u32 v6, s42, v5
    v_add_u32 v6, {EXL}, v6
    """)
    for t in range(2):
        for k in range(2):
            for rq in range(4):
                r = vO + (t * 4 + 2 + k) * 16 + 4 * rq
                A(f"ds_write_b128 v3, {vr(r,4)} offset:{((t*2+k)*4+rq)*1024}")
    for d in range(8):
        A(f"ds_write_b128 v4, {ar(aO9+4*d,4)} offset:{d*1024}")
    A(f"ds_write_b32 v6, v{vL0}\nds_write_b32 v6, v{vL1} offset:256\nds_write_b32 v6, v{vL9} offset:512")
    A("s_waitcnt lgkmcnt(0)\ns_barrier")
    A(f"""
    s_and_b32 s44, s3, 1
    s_mul_i32 s42, s44, 768
    v_and_b32 v7, 31, v0
    v_lshlrev_b32 v7, 2, v7
    v_add_u32 v7, s42, v7
    v_add_u32 v7, {EXL}, v7
    v_add_u32 v8, {EXL}, v5
    """)
    for t in range(2):
        for k, off in enumerate((0, 128, 1536, 1536 + 128)):
            A(f"ds_read_b32 v{10+t*4+k}, v7 offset:{off + t*256}")
    for w in range(4):
        A(f"ds_read_b32 v{18+w}, v8 offset:{w*768 + 512}")
    A(f"""
    s_xor_b32 s43, s3, 2
    s_lshl_b32 s43, s43, 14
    v_add_u32 v3, s43, v2
    """)
    for k in range(2):
        for rq in range(4):
            A(f"ds_read_b128 {vr(80 + (k*4+rq)*4, 4)}, v3 offset:{(k*4+rq)*1024}")
    A("s_waitcnt lgkmcnt(8)")
    A(f"""
    v_add_f32 v10, v10, v11
    v_add_f32 v12, v12, v13
    v_add_f32 v14, v14, v15
    v_add_f32 v16, v16, v17
    v_add_f32 v18, v18, v19
    v_add_f32 v20, v20, v21
    v_add_f32 v10, v10, v12
    v_add_f32 v14, v14, v16
    v_add_f32 v18, v18, v20
    v_rcp_f32 v11, v10
    v_rcp_f32 v15, v14
    v_rcp_f32 v19, v18
    """)
    A(f"""
    s_mul_i32 s46, s{sB}, 144
    s_lshl_b32 s47, s44, 6
    s_add_u32 s46, s46, s47
    v_and_b32 v7, 31, v0
    v_lshrrev_b32 v9, 5, v0
    v_add_u32 v12, s46, v7
    v_add_u32 v13, 32, v12
    """)
    for t, (rv, dv) in enumerate(((12, 16), (13, 17))):
        A(f"""
        v_lshrrev_b32 v20, 5, v{rv}
        v_lshlrev_b32 v20, 18, v20
        v_and_b32 v21, 31, v{rv}
        v_lshl_add_u32 v21, v9, 5, v21
        v_lshl_add_u32 v{dv}, v21, 4, v20
        """)
    A(f"""
    s_lshr_b32 s45, s3, 1
    s_lshl_b32 s47, s{sH}, 3
    s_lshl_b32 s48, s45, 2
    s_add_u32 s47, s47, s48
    s_lshl_b32 s47, s47, 10
    """)
    for t in range(2):
        if t == 1:
            for k in range(2):
                for rq in range(4):
                    A(f"ds_read_b128 {vr(80 + (k*4+rq)*4, 4)}, v3 offset:{((2+k)*4+rq)*1024}")
        A("s_waitcnt lgkmcnt(0)")
        rinv = 11 if t == 0 else 15
        dv = 16 if t == 0 else 17
        for k in range(2):
            for ks2 in range(2):
                own = vO + (t * 4 + k) * 16 + 8 * ks2
                oth = 80 + (k * 4 + 2 * ks2) * 4
                for i in range(8):
                    A(f"v_add_f32 v{own+i}, v{own+i}, v{oth+i}")
                for i in range(8):
                    A(f"v_mul_f32 v{own+i}, v{rinv}, v{own+i}")
                pk = 112 + (k * 2 + ks2) * 4
                for i in range(4):
                    A(f"v_cvt_pk_bf16_f32 v{pk+i}, v{own+2*i}, v{own+2*i+1}")
                A(f"buffer_store_dwordx4 {vr(pk,4)}, v{dv}, s[{sO}:{sO+3}], s47 offen offset:{(2*k+ks2)*1024}")
        if t == 0: A("s_nop 1")
    A(f"""
    s_lshl_b32 s43, s3, 11
    v_add_u32 v4, s43, v2
    v_add_u32 v4, {EX9}, v4
    """)
    for w in range(4):
        for k in range(2):
            A(f"ds_read_b128 {vr(80 + (w*2+k)*4, 4)}, v4 offset:{w*8192 + k*1024}")
    A(f"""
    s_mul_i32 s46, s{sB}, 144
    s_add_u32 s46, s46, 128
    v_and_b32 v7, 15, v0
    v_add_u32 v12, s46, v7
    v_lshrrev_b32 v20, 5, v12
    v_lshlrev_b32 v20, 18, v20
    v_and_b32 v21, 31, v12
    v_lshrrev_b32 v9, 4, v0
    v_and_b32 v13, 1, v9
    v_lshl_add_u32 v21, v13, 5, v21
    v_lshl_add_u32 v16, v21, 4, v20
    v_lshrrev_b32 v13, 1, v9
    v_lshl_add_u32 v16, v13, 3, v16
    s_lshl_b32 s47, s{sH}, 3
    s_lshl_b32 s48, s3, 1
    s_add_u32 s47, s47, s48
    s_lshl_b32 s47, s47, 10
    s_waitcnt lgkmcnt(0)
    """)
    for k in range(2):
        for i in range(4):
            a, b, c, d = [80 + (w * 2 + k) * 4 + i for w in range(4)]
            A(f"v_add_f32 v{a}, v{a}, v{b}\nv_add_f32 v{c}, v{c}, v{d}\nv_add_f32 v{a}, v{a}, v{c}\nv_mul_f32 v{a}, v19, v{a}")
        a = 80 + k * 4
        A(f"v_cvt_pk_bf16_f32 v{112+2*k}, v{a}, v{a+1}\nv_cvt_pk_bf16_f32 v{113+2*k}, v{a+2}, v{a+3}")
        A(f"buffer_store_dwordx2 {vr(112+2*k,2)}, v16, s[{sO}:{sO+3}], s47 offen offset:{k*1024}")
    A("s_waitcnt lgkmcnt(0)\ns_barrier")

def gen_k1(A):
    prologue(A)
    A.label("K1_HEAD")
    A(f"""
    s_lshl_b32 s40, s{sHC}, 4
    s_add_u32 s{sH}, s{sJ}, s40
    s_lshl_b32 s40, s{sB}, 5
    s_add_u32 s40, s40, s{sH}
    s_lshr_b32 s41, s40, 15
    s_lshl_b32 s40, s40, 17
    s_add_u32 s{sK}, s{sKb}, s40
    s_addc_u32 s{sK+1}, s{sKb+1}, s41
    s_add_u32 s{sV}, s{sVb}, s40
    s_addc_u32 s{sV+1}, s{sVb+1}, s41
    """)
    zero_acc_q(A)
    A("""
    s_cmp_eq_u32 s3, 0
    s_cbranch_scc1 K1_Q0
    s_cmp_eq_u32 s3, 1
    s_cbranch_scc1 K1_Q1
    s_cmp_eq_u32 s3, 2
    s_cbranch_scc1 K1_Q2
    s_branch K1_Q3
    """)
    for r in range(4): q_phase(A, r)
    q_exchange(A)
    attention(A)
    epilogue(A)
    A(f"""
    s_add_u32 s{sHC}, s{sHC}, 1
    s_cmp_lt_u32 s{sHC}, 2
    s_cbranch_scc1 K1_HEAD
    """)
    A.label("K1_END")
    A("s_endpgm")
```

```python
from asmlib import *
PD = 8
sO, sWo, sOut = 4, 8, 12
sKO, sKW = 20, 21
vOo = 2
vWd = 5
vAa = 7
vBf = 16
vAf = 112
vAcc = 128

def loads(i):
    slot = i % PD
    ops = []
    for t in range(3):
        ops.append(f"buffer_load_dwordx4 {vr(vBf + slot*12 + t*4, 4)}, v{vOo+t}, s[{sO}:{sO+3}], s{sKO} offen")
    ops.append(f"s_add_u32 m0, s22, {slot*2048}")
    ops.append(f"s_add_u32 s{sKO}, s{sKO}, 4096")
    ops.append(f"buffer_load_dwordx4 v{vWd}, s[{sWo}:{sWo+3}], s{sKW} offen lds")
    ops.append(f"buffer_load_dwordx4 v{vWd+1}, s[{sWo}:{sWo+3}], s{sKW} offen offset:1024 lds")
    ops.append(f"s_add_u32 s{sKW}, s{sKW}, {64*1152}")
    return ops
def areads(i):
    slot = i % PD; st = i & 1
    return [f"ds_read_b64_tr_b16 {vr(vAf + st*8 + nt*4 + e*2, 2)}, v{vAa+nt} offset:{slot*2048 + e*1024}" for nt in range(2) for e in range(2)]
def mfmas(i):
    slot = i % PD; st = i & 1
    r = []
    for nt in range(2):
        for t in range(3):
            d = vr(vAcc + (nt*3+t)*16, 16)
            r.append(f"v_mfma_f32_32x32x16_bf16 {d}, {vr(vAf + st*8 + nt*4, 4)}, {vr(vBf + slot*12 + t*4, 4)}, {d}")
    return r

def step(A, i, do_load, vm, do_read=True):
    if do_read:
        A(f"s_waitcnt vmcnt({vm})")
    A("s_waitcnt lgkmcnt(0)")
    ms = mfmas(i)
    rd = areads(i + 1) if do_read else []
    ld = loads(i) if do_load else []
    A(ms[0])
    for r in rd[:2]: A(r)
    A(ms[1])
    for r in rd[2:]: A(r)
    A(ms[2])
    A(ms[3])
    if ld:
        A(ld[0]); A(ms[4]); A(ld[1]); A(ld[3]); A(ms[5]); A(ld[2]); A(ld[4]); A(ld[5]); A(ld[6]); A(ld[7])
    else:
        A(ms[4]); A(ms[5])

def gen_k2(A):
    A(f"""
    s_cmp_ge_u32 s2, 216
    s_cbranch_scc1 K2_END
    s_load_dwordx4 s[8:11], s[0:1], 32
    s_load_dwordx2 s[4:5], s[0:1], 56
    v_lshrrev_b32 v1, 6, v0
    v_and_b32 v0, 63, v0
    s_nop 0
    v_readfirstlane_b32 s3, v1
    s_and_b32 s40, s2, 7
    s_lshr_b32 s41, s2, 3
    s_mul_i32 s42, s41, 57
    s_lshr_b32 s42, s42, 9
    s_mul_i32 s43, s42, 9
    s_sub_u32 s43, s41, s43
    s_mul_i32 s44, s40, 3
    s_add_u32 s44, s44, s42
    s_waitcnt lgkmcnt(0)
    s_mov_b32 s12, s10
    s_mov_b32 s13, s11
    s_mov_b32 s14, {2304*1152}
    s_mov_b32 s15, 0x20000
    s_mov_b32 s10, {4096*1152}
    s_mov_b32 s11, 0x20000
    s_mov_b32 s6, {72*256*1024}
    s_mov_b32 s7, 0x20000
    s_mul_i32 s45, s44, {3*256}
    s_add_u32 s45, s45, s3
    s_lshl_b32 s{sKO}, s45, 10
    s_mul_i32 s45, s3, {16*1152}
    s_lshl_b32 s46, s43, 7
    s_add_u32 s{sKW}, s45, s46
    s_lshl_b32 s22, s3, 14
    v_lshlrev_b32 v{vOo}, 4, v0
    v_add_u32 v{vOo+1}, 0x40000, v{vOo}
    v_add_u32 v{vOo+2}, 0x80000, v{vOo}
    v_lshrrev_b32 v8, 3, v0
    v_mul_u32_u24 v8, 1152, v8
    v_lshrrev_b32 v9, 4, v0
    v_and_b32 v9, 1, v9
    v_lshlrev_b32 v9, 2, v9
    v_and_b32 v10, 7, v0
    v_xor_b32 v9, v9, v10
    v_lshl_add_u32 v{vWd}, v9, 4, v8
    v_add_u32 v{vWd+1}, 8192, v{vWd}
    """)
    A(f"""
    v_and_b32 v9, 15, v0
    v_lshrrev_b32 v9, 2, v9
    v_lshrrev_b32 v10, 5, v0
    v_lshl_add_u32 v11, v10, 2, v9
    v_lshlrev_b32 v11, 7, v11
    v_add_u32 v11, s22, v11
    v_lshrrev_b32 v12, 4, v0
    v_and_b32 v12, 1, v12
    v_and_b32 v13, 3, v0
    v_lshrrev_b32 v14, 1, v13
    v_lshl_add_u32 v12, v12, 1, v14
    v_lshrrev_b32 v14, 1, v9
    v_lshlrev_b32 v14, 2, v14
    v_xor_b32 v12, v12, v14
    v_lshl_add_u32 v11, v12, 4, v11
    v_and_b32 v13, 1, v13
    v_lshl_add_u32 v{vAa}, v13, 3, v11
    v_xor_b32 v{vAa+1}, 64, v{vAa}
    v_mov_b32 v12, 0
    v_mov_b32 v13, 0
    v_mov_b32 v14, 0
    v_mov_b32 v15, 0
    s_nop 1
    """)
    for i in range(6):
        A(f"v_mfma_f32_32x32x16_bf16 {vr(vAcc+16*i,16)}, v[12:15], v[12:15], 0")
    for i in range(PD):
        l = loads(i)
        for x in l[:3]: A(x)
        A(l[3]); A(l[4]); A(l[5]); A(l[6]); A(l[7])
    A(f"s_waitcnt vmcnt({5*(PD-1)})")
    for r in areads(0): A(r)
    A("s_mov_b32 s23, 0")
    A.label("K2_LOOP")
    for i in range(PD):
        step(A, i, True, 5 * (PD - 2))
    A("s_add_u32 s23, s23, 1\ns_cmp_lt_u32 s23, 7\ns_cbranch_scc1 K2_LOOP")
    for i in range(PD):
        last = (i == PD - 1)
        step(A, i, False, 5 * (PD - 2 - i) if not last else 0, do_read=not last)
    A("s_nop 15\ns_nop 7\ns_waitcnt lgkmcnt(0)\ns_barrier")
    A(f"""
    v_lshlrev_b32 v2, 4, v0
    s_mul_i32 s40, s3, 24576
    v_add_u32 v3, s40, v2
    """)
    for tl in range(6):
        for rq in range(4):
            A(f"ds_write_b128 v3, {vr(vAcc + tl*16 + rq*4, 4)} offset:{(tl*4+rq)*1024}")
    A("s_waitcnt lgkmcnt(0)\ns_barrier")
    A(f"""
    s_lshl_b32 s40, s3, 10
    v_add_u32 v3, s40, v2
    v_add_u32 v4, 49152, v3
    """)
    for tl in range(6):
        for w in range(4):
            base = 3 if w < 2 else 4
            A(f"ds_read_b128 {vr(16 + (tl*4+w)*4, 4)}, v{base} offset:{(w%2)*24576 + tl*4096}")
    A(f"""
    s_mul_i32 s45, s44, 96
    v_and_b32 v5, 31, v0
    v_add_u32 v5, s45, v5
    v_mul_u32_u24 v5, 1152, v5
    v_lshrrev_b32 v6, 5, v0
    v_lshl_add_u32 v5, v6, 3, v5
    s_lshl_b32 s46, s43, 7
    s_lshl_b32 s47, s3, 4
    s_add_u32 s46, s46, s47
    v_add_u32 v5, s46, v5
    v_add_u32 v6, {32*1152}, v5
    v_add_u32 v7, {64*1152}, v5
    s_waitcnt lgkmcnt(0)
    """)
    for tl in range(6):
        nt, t = divmod(tl, 3)
        b = 16 + tl * 16
        for i in range(4):
            A(f"v_add_f32 v{b+i}, v{b+i}, v{b+4+i}\nv_add_f32 v{b+8+i}, v{b+8+i}, v{b+12+i}\nv_add_f32 v{b+i}, v{b+i}, v{b+8+i}")
        A(f"v_cvt_pk_bf16_f32 v{b+4}, v{b}, v{b+1}\nv_cvt_pk_bf16_f32 v{b+5}, v{b+2}, v{b+3}")
        A(f"buffer_store_dwordx2 {vr(b+4,2)}, v{5+t}, s[{sOut}:{sOut+3}], 0 offen offset:{nt*64}")
    A.label("K2_END")
    A("s_endpgm")
```

```python
import sys
from asmlib import *
import k1, k2
HDR = open("standalone__mha_block_cached__near_ridge.s.ref").read().split("; Override")[0]
def desc(name, vgpr, sgpr, accum):
    return f""".amdhsa_kernel {name}
  .amdhsa_next_free_vgpr {vgpr}
  .amdhsa_next_free_sgpr {sgpr}
  .amdhsa_accum_offset {accum}
  .amdhsa_group_segment_fixed_size 0
  .amdhsa_kernarg_size 64
  .amdhsa_user_sgpr_count 2
  .amdhsa_user_sgpr_kernarg_segment_ptr 1
  .amdhsa_system_sgpr_workgroup_id_x 1
  .amdhsa_float_denorm_mode_32 3
.end_amdhsa_kernel
"""
def kern(name, gen):
    A = Asm(); gen(A)
    return f".globl {name}\n.p2align 8\n.type {name},@function\n{name}:\n" + A.text()
out = HDR
out += "; @launch kernel=mha_attn_kernel grid=(256,1,1) block=(256,1,1) lds=163840\n"
out += "; @launch kernel=mha_oproj_kernel grid=(216,1,1) block=(256,1,1) lds=98304\n"
out += '.amdgcn_target "amdgcn-amd-amdhsa--gfx950"\n.text\n'
out += kern("mha_attn_kernel", k1.gen_k1)
out += kern("mha_oproj_kernel", k2.gen_k2)
out += '.section .rodata,"a"\n.p2align 6\n'
out += desc("mha_attn_kernel", 512, 96, 256)
out += ".p2align 6\n"
out += desc("mha_oproj_kernel", 256, 64, 256)
open(sys.argv[1] if len(sys.argv) > 1 else "standalone__mha_block_cached__near_ridge.s", "w").write(out)
```
